```python
import torch

def _softmax(x, axis=-1):
    return torch.softmax(x, dim=axis)
def _gelu(x):
    return torch.nn.functional.gelu(x, approximate="tanh")
def _silu(x):
    return torch.nn.functional.silu(x)
def _sigmoid(x):
    return torch.sigmoid(x)
def _layernorm(x, axis=-1, eps=1e-5):
    m = x.mean(dim=axis, keepdim=True)
    v = x.var(dim=axis, keepdim=True, unbiased=False)
    return (x - m) / torch.sqrt(v + eps)
def _scatter_add(tgt, idx, src, axis=0):
    return tgt.clone().index_add_(axis, idx, src)
def _segment_sum(src, seg, n):
    out = torch.zeros((n,) + src.shape[1:], dtype=src.dtype)
    return out.index_add_(0, seg, src)
def _pad(x, pw):
    flat = tuple(v for pair in reversed(pw) for v in pair)
    return torch.nn.functional.pad(x, flat)

kernel_name = 'gated_mix__sliding_local_dilated__dense_activation_squared_relu__prompt'

def setup_inputs():

    _w = (lambda a: (lambda t: t.to(torch.bfloat16) if t.is_floating_point() else t)(torch.as_tensor(a)))
    def _A_setup():
        B, S, D = 1, 2048, 576
        return {
            "x": _w((lambda *s: torch.randn(*s, dtype=torch.bfloat16) * 0.05)(B, S, D)),
            "wqkv": _w((lambda *s: torch.randn(*s, dtype=torch.bfloat16) * 0.8)(D, 3 * D)),
            "wo": _w((lambda *s: torch.randn(*s, dtype=torch.bfloat16) * 0.05)(D, D)),
        }
    _A_in = _A_setup()

    def _B_setup():
        B, S, D, F = 1, 2048, 576, 4608
        return {
            "x": _w((lambda *s: torch.randn(*s, dtype=torch.bfloat16) * 0.05)(B, S, D)),
            "w1": _w((lambda *s: torch.randn(*s, dtype=torch.bfloat16) * 0.1)(D, F)),
            "b1": _w((lambda *s: torch.randn(*s, dtype=torch.bfloat16) * 0.1)(F)),
            "w2": _w((lambda *s: torch.randn(*s, dtype=torch.bfloat16) * 0.1)(F, D)),
            "b2": _w((lambda *s: torch.randn(*s, dtype=torch.bfloat16) * 0.2)(D)),
        }
    _B_in = _B_setup()

    return {
        "A_x": _A_in["x"],
        "A_wqkv": _A_in["wqkv"],
        "A_wo": _A_in["wo"],
        "B_x": _B_in["x"],
        "B_w1": _B_in["w1"],
        "B_b1": _B_in["b1"],
        "B_w2": _B_in["w2"],
        "B_b2": _B_in["b2"],
        "gate_w": _w((lambda *s: torch.randn(*s, dtype=torch.bfloat16) * 0.05)(576) * 16.0),
    }

def reference(A_x, A_wqkv, A_wo, B_x, B_w1, B_b1, B_w2, B_b2, gate_w):
    def _A_ref(x, wqkv, wo):
        B, S, D = x.shape
        H = 32; Dh = D // H
        W, dil = 8, 2
        qkv = (lambda x, *d: x.permute(*d))((x @ wqkv).reshape(B, S, 3, H, Dh), 2, 0, 3, 1, 4)
        q, k, v = qkv[0], qkv[1], qkv[2]
        scale = Dh ** -0.5
        pos = torch.arange(S)
        off = torch.arange(W) * dil
        idx = pos[:, None] - off[None, :]
        mask = idx >= 0
        idx_c = torch.where(mask, idx, 0).reshape(-1)
        kg = k[:, :, idx_c, :].reshape(B, H, S, W, Dh)
        vg = v[:, :, idx_c, :].reshape(B, H, S, W, Dh)
        logits = torch.einsum("bhsd,bhswd->bhsw", q, kg) * scale
        logits = torch.where(mask[None, None, :, :], logits, -1e9)
        attn = _softmax(logits, axis=-1)
        o = torch.einsum("bhsw,bhswd->bhsd", attn, vg)
        return (lambda x, *d: x.permute(*d))(o, 0, 2, 1, 3).reshape(B, S, D) @ wo

    def _B_ref(x, w1, b1, w2, b2):
        h = torch.einsum("bsd,df->bsf", x, w1) + b1
        zero = torch.zeros_like(h)
        r = torch.where(h > zero, h, zero)
        h = r * r
        out = torch.einsum("bsf,fd->bsd", h, w2) + b2
        return out

    x = A_x
    g = _sigmoid((x * gate_w).sum(-1, keepdims=True))
    a = _A_ref(x, A_wqkv, A_wo)
    b = _B_ref(x, B_w1, B_b1, B_w2, B_b2)
    return g * a + (1 - g) * b
```

```python
import sys
NAME = "gated_mix__sliding_local_dilated__dense_activation_squared_relu__prompt"
def kd(name, vgpr=64, sgpr=96):
    return f""".amdhsa_kernel {name}
  .amdhsa_next_free_vgpr {vgpr}
  .amdhsa_next_free_sgpr {sgpr}
  .amdhsa_accum_offset {vgpr}
  .amdhsa_group_segment_fixed_size 0
  .amdhsa_kernarg_size 96
  .amdhsa_user_sgpr_count 2
  .amdhsa_user_sgpr_kernarg_segment_ptr 1
  .amdhsa_system_sgpr_workgroup_id_x 1
.end_amdhsa_kernel
"""
def srd(d, b, size):
    return f"""    s_mov_b32 s{d}, s{b}
    s_mov_b32 s{d+1}, s{b+1}
    s_mov_b32 s{d+2}, {size}
    s_mov_b32 s{d+3}, 0x00020000
"""
QKV_OFF=0; H_OFF=16<<20; G_OFF=64<<20
R=8
def gemm1(name, warg, N, ncb, mode):
    s = f""".p2align 8
.type {name},@function
{name}:
    s_cmp_ge_u32 s2, {ncb*(2048//R)}
    s_cbranch_scc1 {name}_done
    s_load_dwordx2 s[4:5], s[0:1], 0
    s_load_dwordx2 s[6:7], s[0:1], {warg}
    s_load_dwordx2 s[8:9], s[0:1], 88
    s_load_dwordx2 s[10:11], s[0:1], 40
    s_lshr_b32 s12, s2, 8
    s_and_b32 s13, s2, 255
    s_waitcnt lgkmcnt(0)
"""
    s += srd(16, 6, 576*N*2) + srd(20, 8, 256<<20) + srd(24, 10, 4608*2)
    s += f"""    s_mul_i32 s14, s13, {R*1152}
    s_add_u32 s4, s4, s14
    s_addc_u32 s5, s5, 0
    s_lshl_b32 s15, s12, 6
    v_add_u32 v1, s15, v0        ; column
    v_lshlrev_b32 v2, 1, v1
"""
    for r in range(R): s += f"    v_mov_b32 v{10+r}, 0\n"
    s += f"""    s_mov_b32 s28, 0
    s_mov_b32 s29, 0
{name}_loop:
"""
    for r in range(R): s += f"    s_load_dword s{32+r}, s[4:5], {r*1152}\n"
    s += f"""    buffer_load_ushort v3, v2, s[16:19], s29 offen
    s_add_u32 s29, s29, {N*2}
    buffer_load_ushort v4, v2, s[16:19], s29 offen
    s_add_u32 s29, s29, {N*2}
    s_waitcnt vmcnt(0) lgkmcnt(0)
    v_lshlrev_b32 v3, 16, v3
    v_lshlrev_b32 v4, 16, v4
"""
    for r in range(R):
        s += f"""    s_lshl_b32 s30, s{32+r}, 16
    s_and_b32 s31, s{32+r}, 0xffff0000
    v_fmac_f32 v{10+r}, s30, v3
    v_fmac_f32 v{10+r}, s31, v4
"""
    s += f"""    s_add_u32 s4, s4, 4
    s_addc_u32 s5, s5, 0
    s_add_u32 s28, s28, 2
    s_cmp_lt_u32 s28, 576
    s_cbranch_scc1 {name}_loop
"""
    if mode == 'qkv':
        s += f"""    s_mul_i32 s14, s13, {R*1728*4}
    v_lshlrev_b32 v5, 2, v1
"""
        for r in range(R):
            s += f"    buffer_store_dword v{10+r}, v5, s[20:23], s14 offen\n    s_add_u32 s14, s14, {1728*4}\n"
    else:
        s += f"""    buffer_load_ushort v3, v2, s[24:27], 0 offen
    s_lshl_b32 s14, s13, {5}
    s_add_u32 s14, s14, {G_OFF}
    s_add_u32 s8, s8, s14
    s_addc_u32 s9, s9, 0
    s_load_dwordx8 s[32:39], s[8:9], 0
    s_waitcnt vmcnt(0) lgkmcnt(0)
    v_lshlrev_b32 v3, 16, v3
    s_mul_i32 s14, s13, {R*5184*4}
    s_add_u32 s14, s14, {H_OFF}
    v_lshlrev_b32 v5, 2, v1
"""
        for r in range(R):
            s += f"""    v_add_f32 v{10+r}, v{10+r}, v3
    v_max_f32 v{10+r}, 0, v{10+r}
    v_mul_f32 v{10+r}, v{10+r}, v{10+r}
    v_sub_f32 v6, 1.0, s{32+r}
    v_mul_f32 v{10+r}, v{10+r}, v6
    buffer_store_dword v{10+r}, v5, s[20:23], s14 offen
    s_add_u32 s14, s14, {5184*4}
"""
    s += f"""    s_waitcnt vmcnt(0)
{name}_done:
    s_endpgm
"""
    return s

def gate(name):
    s = f""".p2align 8
.type {name},@function
{name}:
    s_cmp_ge_u32 s2, 32
    s_cbranch_scc1 {name}_done
    s_load_dwordx2 s[4:5], s[0:1], 0
    s_load_dwordx2 s[6:7], s[0:1], 64
    s_load_dwordx2 s[8:9], s[0:1], 88
    s_waitcnt lgkmcnt(0)
""" + srd(16, 4, 2048*1152) + srd(20, 8, 256<<20) + f"""
    s_lshl_b32 s15, s2, 6
    v_add_u32 v1, s15, v0
    s_movk_i32 s14, 1152
    v_mul_lo_u32 v2, v1, s14
    v_mov_b32 v10, 0
    s_mov_b32 s28, 0
{name}_loop:
    s_load_dword s32, s[6:7], 0
    buffer_load_dword v3, v2, s[16:19], s28 offen
    s_waitcnt vmcnt(0) lgkmcnt(0)
    v_lshlrev_b32 v4, 16, v3
    v_and_b32 v3, 0xffff0000, v3
    s_lshl_b32 s30, s32, 16
    s_and_b32 s31, s32, 0xffff0000
    v_fmac_f32 v10, s30, v4
    v_fmac_f32 v10, s31, v3
    s_add_u32 s6, s6, 4
    s_addc_u32 s7, s7, 0
    s_add_u32 s28, s28, 4
    s_cmp_lt_u32 s28, 1152
    s_cbranch_scc1 {name}_loop
    v_mul_f32 v10, 0xbfb8aa3b, v10
    v_exp_f32 v10, v10
    s_nop 1
    v_add_f32 v10, 1.0, v10
    v_rcp_f32 v10, v10
    s_nop 1
    v_lshlrev_b32 v5, 2, v1
    s_mov_b32 s14, {G_OFF}
    buffer_store_dword v10, v5, s[20:23], s14 offen
    s_waitcnt vmcnt(0)
{name}_done:
    s_endpgm
"""
    return s

def attn(name):
    s = f""".p2align 8
.type {name},@function
{name}:
    s_cmp_ge_u32 s2, 1024
    s_cbranch_scc1 {name}_done
    s_load_dwordx2 s[8:9], s[0:1], 88
    s_waitcnt lgkmcnt(0)
""" + srd(20, 8, 256<<20) + f"""
    s_lshl_b32 s15, s2, 1
    v_lshrrev_b32 v1, 5, v0
    v_add_u32 v1, s15, v1        ; token
    v_and_b32 v2, 31, v0         ; head
    v_mul_u32_u24 v2, 72, v2     ; head byte off
    s_movk_i32 s14, {1728*4}
    v_mul_lo_u32 v3, v1, s14
    v_add_u32 v3, v3, v2
"""
    for d in range(18): s += f"    buffer_load_dword v{10+d}, v3, s[20:23], 0 offen offset:{d*4}\n"
    for w in range(8):
        s += f"""    v_subrev_u32 v4, {2*w}, v1
    v_max_i32 v5, 0, v4
    v_mul_lo_u32 v5, v5, s14
    v_add_u32 v5, v5, v2
"""
        for d in range(18): s += f"    buffer_load_dword v{30+d}, v5, s[20:23], 0 offen offset:{576*4+d*4}\n"
        s += f"    s_waitcnt vmcnt(0)\n    v_mov_b32 v{50+w}, 0\n"
        for d in range(18): s += f"    v_fmac_f32 v{50+w}, v{10+d}, v{30+d}\n"
        s += f"""    v_mul_f32 v{50+w}, 0x3eae1a93, v{50+w}   ; 18^-0.5*log2e
    v_mov_b32 v6, 0xce6e6b28
    v_cmp_le_i32 vcc, 0, v4
    s_nop 1
    v_cndmask_b32 v{50+w}, v6, v{50+w}, vcc
"""
    s += "    v_max_f32 v6, v50, v51\n"
    for w in range(2, 8): s += f"    v_max_f32 v6, v6, v{50+w}\n"
    s += "    v_mov_b32 v7, 0\n"
    for w in range(8):
        s += f"    v_sub_f32 v{50+w}, v{50+w}, v6\n    v_exp_f32 v{50+w}, v{50+w}\n    s_nop 1\n    v_add_f32 v7, v7, v{50+w}\n"
    s += f"""    v_rcp_f32 v7, v7
    v_lshlrev_b32 v8, 2, v1
    s_mov_b32 s16, {G_OFF}
    buffer_load_dword v8, v8, s[20:23], s16 offen
    s_waitcnt vmcnt(0)
    v_mul_f32 v7, v7, v8
"""
    for d in range(18): s += f"    v_mov_b32 v{10+d}, 0\n"
    s += f"    s_movk_i32 s17, {1152*4}\n"
    for w in range(8):
        s += f"""    v_subrev_u32 v4, {2*w}, v1
    v_max_i32 v5, 0, v4
    v_mul_lo_u32 v5, v5, s14
    v_add_u32 v5, v5, v2
    v_mul_f32 v{50+w}, v{50+w}, v7
"""
        for d in range(18): s += f"    buffer_load_dword v{30+d}, v5, s[20:23], s17 offen offset:{d*4}\n"
        s += f"    s_waitcnt vmcnt(0)\n"
        for d in range(18): s += f"    v_fmac_f32 v{10+d}, v{50+w}, v{30+d}\n"
    s += f"""    s_movk_i32 s14, {5184*4}
    v_mul_lo_u32 v3, v1, s14
    v_add_u32 v3, v3, v2
    s_mov_b32 s16, {H_OFF+4608*4}
"""
    for d in range(18): s += f"    buffer_store_dword v{10+d}, v3, s[20:23], s16 offen offset:{d*4}\n"
    s += f"""    s_waitcnt vmcnt(0)
{name}_done:
    s_endpgm
"""
    return s

def gemm2(name):
    s = f""".p2align 8
.type {name},@function
{name}:
    s_cmp_ge_u32 s2, {9*(2048//R)}
    s_cbranch_scc1 {name}_done
    s_load_dwordx2 s[4:5], s[0:1], 88
    s_load_dwordx2 s[6:7], s[0:1], 48
    s_load_dwordx2 s[8:9], s[0:1], 72
    s_load_dwordx2 s[10:11], s[0:1], 56
    s_load_dwordx2 s[44:45], s[0:1], 16
    s_lshr_b32 s12, s2, 8
    s_and_b32 s13, s2, 255
    s_waitcnt lgkmcnt(0)
"""
    s += srd(16, 6, 4608*1152) + srd(20, 8, 2048*1152) + srd(24, 10, 1152) + srd(48, 44, 576*1152)
    s += f"""    s_lshl_b32 s14, s13, 5
    s_add_u32 s14, s14, {G_OFF}
    s_add_u32 s46, s4, s14
    s_addc_u32 s47, s5, 0
    s_mul_i32 s14, s13, {R*5184*4}
    s_add_u32 s14, s14, {H_OFF}
    s_add_u32 s4, s4, s14
    s_addc_u32 s5, s5, 0
    s_lshl_b32 s15, s12, 6
    v_add_u32 v1, s15, v0        ; column
    v_lshlrev_b32 v2, 1, v1
    buffer_load_ushort v3, v2, s[24:27], 0 offen
    s_load_dwordx8 s[32:39], s[46:47], 0
    s_waitcnt vmcnt(0) lgkmcnt(0)
    v_lshlrev_b32 v3, 16, v3
"""
    for r in range(R): s += f"    v_sub_f32 v6, 1.0, s{32+r}\n    v_mul_f32 v{10+r}, v3, v6\n"
    for (lbl, srdn, K) in (("a", 16, 4608), ("b", 48, 576)):
        s += f"""    s_mov_b32 s28, 0
    s_mov_b32 s29, 0
{name}_loop{lbl}:
"""
        for r in range(R): s += f"    s_load_dwordx2 s[{56+2*r}:{57+2*r}], s[4:5], {r*5184*4}\n"
        s += f"""    buffer_load_ushort v3, v2, s[{srdn}:{srdn+3}], s29 offen
    buffer_load_ushort v4, v2, s[{srdn}:{srdn+3}], s29 offen offset:1152
    s_add_u32 s29, s29, 2304
    s_waitcnt vmcnt(0) lgkmcnt(0)
    v_lshlrev_b32 v3, 16, v3
    v_lshlrev_b32 v4, 16, v4
"""
        for r in range(R):
            s += f"    v_fmac_f32 v{10+r}, s{56+2*r}, v3\n    v_fmac_f32 v{10+r}, s{57+2*r}, v4\n"
        s += f"""    s_add_u32 s4, s4, 8
    s_addc_u32 s5, s5, 0
    s_add_u32 s28, s28, 2
    s_cmp_lt_u32 s28, {K}
    s_cbranch_scc1 {name}_loop{lbl}
"""
    s += f"    s_mul_i32 s14, s13, {R*1152}\n"
    for r in range(R):
        s += f"""    v_cvt_pk_bf16_f32 v{10+r}, v{10+r}, v{10+r}
    buffer_store_short v{10+r}, v2, s[20:23], s14 offen
    s_add_u32 s14, s14, 1152
"""
    s += f"""    s_waitcnt vmcnt(0)
{name}_done:
    s_endpgm
"""
    return s

def build(pre_launch="", pre_code="", pre_kd="", post_launch=""):
    s = pre_launch
    s += f"; @launch kernel=gate_kernel grid=(32,1,1) block=(64,1,1) lds=0\n"
    s += f"; @launch kernel=g1a_kernel grid=({27*256},1,1) block=(64,1,1) lds=0\n"
    s += f"; @launch kernel=g1b_kernel grid=({72*256},1,1) block=(64,1,1) lds=0\n"
    s += f"; @launch kernel=attn_kernel grid=(1024,1,1) block=(64,1,1) lds=0\n"
    s += f"; @launch kernel=g2_kernel grid=({9*256},1,1) block=(64,1,1) lds=0\n"
    s += post_launch
    s += '.amdgcn_target "amdgcn-amd-amdhsa--gfx950"\n.text\n'
    s += pre_code
    s += gate("gate_kernel") + gemm1("g1a_kernel", 8, 1728, 27, 'qkv') + gemm1("g1b_kernel", 32, 4608, 72, 'h') + attn("attn_kernel") + gemm2("g2_kernel")
    s += '.section .rodata,"a"\n'
    for k in ("gate_kernel", "g1a_kernel", "g1b_kernel", "attn_kernel", "g2_kernel"):
        s += ".p2align 6\n" + kd(k)
    s += pre_kd
    return s
if __name__ == "__main__":
    open(sys.argv[1], "w").write(build())
```

```python
from naive import *
code = """.p2align 8
.type empty_kernel,@function
empty_kernel:
    s_endpgm
"""
for n, g, lds, vg in ((0,256,0,32),(500,256,0,32),(500,1,0,32),(500,256,160*1024,256), (500,1024,0,32)):
    s = build(post_launch="".join(f"; @launch kernel=empty_kernel grid=({g},1,1) block=(256,1,1) lds={lds}\n" for _ in range(n)), pre_code=code if n else "", pre_kd=(".p2align 6\n"+kd("empty_kernel", vg)) if n else "")
    if vg == 256: s = s.replace(".amdhsa_next_free_vgpr 256", ".amdhsa_next_free_vgpr 512")
    open(f"e_{n}_{g}_{lds}.s", "w").write(s)
```

```python
import re
TRANS = ("v_exp_f32","v_log_f32","v_rcp_f32","v_rsq_f32","v_sqrt_f32","v_sin_f32","v_cos_f32")
def regs(tok):
    tok = tok.strip().lstrip('-').strip('|')
    m = re.fullmatch(r"([vas])(\d+)", tok)
    if m: return {(m.group(1), int(m.group(2)))}
    m = re.fullmatch(r"([vas])\[(\d+):(\d+)\]", tok)
    if m: return {(m.group(1), i) for i in range(int(m.group(2)), int(m.group(3))+1)}
    if tok in ("vcc","m0","exec","scc"): return {(tok,0)}
    if tok in ("vcc_lo","vcc_hi"): return {("vcc",0)}
    if tok in ("exec_lo","exec_hi"): return {("exec",0)}
    return set()
class Ins:
    def __init__(self, text):
        self.text = text.strip()
        t = self.text.split(';')[0].strip()
        self.label = t.endswith(':')
        self.directive = t.startswith('.')
        self.defs=set(); self.uses=set(); self.srcC=set(); self.srcAB=set(); self.sdata=set()
        self.kind='x'; self.op = t.split()[0] if t else ''
        if self.label or self.directive or not t: self.kind='n'; return
        op = self.op
        rest = t[len(op):].strip()
        parts = [p.strip() for p in rest.split(',')] if rest else []
        if parts:
            last = parts[-1].split(); parts[-1] = last[0] if last else ''; self.mods = last[1:]
        else: self.mods = []
        R = [regs(p) for p in parts]
        U = lambda xs: set().union(*xs) if xs else set()
        if op.startswith("v_mfma"):
            self.kind='m'; self.defs=R[0]; self.srcAB=R[1]|R[2]; self.srcC=R[3]; self.uses=self.srcAB|self.srcC
        elif op.startswith("v_"):
            self.kind='v'
            if op.startswith("v_permlane"): self.defs=R[0]|R[1]; self.uses=R[0]|R[1]
            elif op.startswith(("v_add_co","v_sub_co","v_addc_co")): self.defs=R[0]|R[1]; self.uses=U(R[2:])
            else:
                self.defs=R[0]; self.uses=U(R[1:])
                if op.startswith(("v_fmac","v_dot2c","v_writelane")) or "_dpp" in op: self.uses|=R[0]
        elif op.startswith("ds_"):
            self.kind='d'
            if op.startswith(("ds_read","ds_bperm","ds_swiz")): self.defs=R[0]; self.uses=U(R[1:])
            else: self.uses=U(R)
        elif op.startswith(("buffer_","global_")):
            self.kind='g'
            if "lds" in self.mods: self.uses=U(R)|{("m0",0)}
            elif "_load" in op: self.defs=R[0]; self.uses=U(R[1:])
            else:
                self.uses=U(R)
                if op.endswith(("x3","x4")): self.sdata=R[0]
        elif op.startswith("s_"):
            self.kind='s'
            if op.startswith(("s_cmp","s_waitcnt","s_barrier","s_nop","s_cbranch","s_branch","s_endpgm","s_setprio","s_sleep")):
                self.uses=U(R)
            else: self.defs=R[0] if R else set(); self.uses=U(R[1:])
        self.trans = op.replace("_e32","").replace("_e64","") in TRANS
    def states(self):
        if self.kind=='n': return 0
        if self.op=="s_nop": return int(self.text.split()[1])+1
        return 1
def need(p, c):
    n = 0
    vec = lambda s: {r for r in s if r[0] in 'va'}
    sca = lambda s: {r for r in s if r[0] in ('s','vcc')}
    if p.kind=='v':
        d = vec(p.defs)
        if c.kind=='m' and d & c.uses: n=max(n,2)
        if c.kind=='v':
            if p.trans and not c.trans and d & c.uses: n=max(n,1)
            if c.op.startswith("v_permlane") and d & c.uses: n=max(n,2)
            if "_dpp" in c.op and d & c.uses: n=max(n,2)
            if c.op.startswith(("v_readfirstlane","v_readlane")) and d & c.uses: n=max(n,1)
            if sca(p.defs) & c.uses: n=max(n,2)
            if c.op.startswith("v_cndmask") and ("vcc",0) in p.defs: n=max(n,2)
            if p.op.startswith("v_dot2") and (d & (c.uses|c.defs)):
                same = c.op==p.op
                n=max(n,3) if not same else n
        if p.op.startswith("v_dot2") and c.kind in 'dgm' and d & c.uses: n=max(n,3)
        if c.kind=='g' and sca(p.defs) & c.uses: n=max(n,5)
        if c.kind=='s' and sca(p.defs) & c.uses: n=max(n,2)
        if c.kind=='s' and c.op.startswith("s_cbranch_vcc") and ("vcc",0) in p.defs: n=max(n,2)
    if p.kind=='m':
        d = p.defs
        big = "32x32" in p.op
        a,b,w = (12,10,7) if big else (8,6,3)
        if c.kind=='m':
            if d & c.srcAB: n=max(n,a)
            if d & c.srcC and (d != c.srcC): n=max(n,b)
            if d & c.defs and not (d & c.srcC): n=max(n,b)
        elif c.kind in 'vdg':
            if d & (c.uses|c.defs): n=max(n,a)
            if c.kind=='v' and p.srcC & c.defs: n=max(n,w)
    if p.kind=='s' and ("m0",0) in p.defs and c.kind=='g' and ("m0",0) in c.uses: n=max(n,1)
    if p.kind=='g' and p.sdata and (p.sdata & c.defs): n=max(n,2)
    return n
def resolve(inss, report=None):
    out=[]
    for c in inss:
        if c.kind!='n':
            dist=0; req=0
            for p in reversed(out):
                if dist>=12: break
                r = need(p,c)-dist
                if r>req: req=r; who=p
                dist+=p.states()
            if req>0:
                if report is not None: report.append((req, who.text, c.text))
                out.append(Ins(f"s_nop {req-1}"))
        out.append(c)
    return out
class Asm:
    def __init__(self): self.ins=[]
    def __call__(self, text):
        for l in text.split('\n'):
            if l.strip(): self.ins.append(Ins(l))
    def extend(self, xs):
        for x in xs: self.ins.append(x if isinstance(x,Ins) else Ins(x))
    def text(self, report=None):
        r = resolve(self.ins, report)
        return "".join((i.text if (i.label or i.directive) else "    "+i.text)+"\n" for i in r)
def check_loop(body):
    rep=[]; resolve([Ins(x) if isinstance(x,str) else x for x in body]*2, rep); return rep
class Gaps:
    def __init__(self, mfmas):
        self.m=list(mfmas); self.g=[dict(s=[],d=[],v=[],g=[],vc=0) for _ in mfmas]
    def room(self,i,k,cost):
        g=self.g[i]
        if g['g']: return False
        if k=='g': return not(g['s'] or g['d'] or g['v'])
        nv=len(g['d'])+g['vc']; ns=len(g['s'])
        if k=='s': return ns==0 or (ns+nv<3)
        extra=max(0,ns-1)
        if k=='d': return not g['d'] and nv+extra<2
        return nv+extra+cost<=2
    def put(self,text,at=0,force=False):
        I=Ins(text); k=I.kind
        cost=2 if (k=='v' and (I.trans or I.op.startswith('v_permlane'))) else 1
        i=at
        while not force and not self.room(i,k,cost):
            i+=1
            if i>=len(self.g): raise RuntimeError("no room for "+text+" from %d"%at)
        self.g[i][k].append(text)
        if k=='v': self.g[i]['vc']+=cost
        return i
    def emit(self):
        out=[]
        for m,g in zip(self.m,self.g):
            out.append(m)
            out+=g['s'][:1]+g['g']+g['d']+g['v']+g['s'][1:]
        return out
def vr(b,n=4,f='v'): return f"{f}[{b}:{b+n-1}]" if n>1 else f"{f}{b}"
def ar(b,n=4): return vr(b,n,'a')
def sr(b,n=4): return vr(b,n,'s')
```

```python
import sys, struct, math
from asmlib import *
NAME = "gated_mix__sliding_local_dilated__dense_activation_squared_relu__prompt"
def f2u(x): return struct.unpack('<I', struct.pack('<f', x))[0]
GS=4608; OS=4*GS+256; PS=16*OS; MS=9*PS
P_BYTES=16*MS
STAMP_OFF = 48<<20
S_X=28; S_W=32; S_W2=36; S_P=40; S_B=44
sW_,sC,sMB,sRHO,sSRC,sTM,sFN = 48,49,50,51,52,53,54
sT0,sT1,sT2 = 55,56,57
sWwr,sWoff,sX0,sX1,sX2,sXoff,sIt = 58,59,60,61,62,63,64
sGoff,sGwr,sPoff,sSl = 65,66,67,68
MF="v_mfma_f32_16x16x32_bf16"
OPT = dict(stamps=False)

def srd(a, d, p, size):
    a(f"s_mov_b32 s{d}, s{p}\ns_mov_b32 s{d+1}, s{p+1}\ns_mov_b32 s{d+2}, {size}\ns_mov_b32 s{d+3}, 0x20000")
def stamp(a, idx):
    if OPT['stamps']:
        a(f"s_memrealtime s[{70+2*idx}:{71+2*idx}]")
def stamps_out(a, n):
    if OPT['stamps']:
        a("s_waitcnt vmcnt(0) lgkmcnt(0)")
        a(f"s_lshl_b32 s{sT0}, s2, 2\ns_add_u32 s{sT0}, s{sT0}, s{sW_}\ns_lshl_b32 s{sT0}, s{sT0}, 6\ns_add_u32 s{sT0}, s{sT0}, {STAMP_OFF}")
        a(f"s_mov_b32 s{S_P+2}, 0x10000000\nv_mov_b32 v1, 0")
        for i in range(n):
            a(f"v_mov_b32 v2, s{70+2*i}\nbuffer_store_dword v2, v1, {sr(S_P)}, s{sT0} offen offset:{4*i}")

def colswz(a, dst, t0, t1):
    a(f"""v_bfe_u32 v{t0}, v0, 1, 2
v_bfe_u32 v{t1}, v0, 4, 2
v_xor_b32 v{t0}, v{t0}, v{t1}
v_and_b32 v{t1}, 1, v0
v_lshlrev_b32 v{t1}, 4, v{t1}
v_lshl_add_u32 v{dst}, v{t0}, 5, v{t1}""")
def trbase(a, dst, bb_expr_reg_or_int, t0, t1):
    a(f"""v_bfe_u32 v{t0}, v0, 3, 2
v_xor_b32 v{t0}, {bb_expr_reg_or_int}, v{t0}
v_lshlrev_b32 v{t0}, 5, v{t0}
v_and_b32 v{t1}, 3, v0
v_lshl_add_u32 v{t0}, v{t1}, 3, v{t0}
v_lshrrev_b32 v{t1}, 2, v0
v_lshl_add_u32 v{dst}, v{t1}, 7, v{t0}""")
def pst_setup(a, vP, t0, t1):
    a(f"""v_bfe_u32 v{t0}, v0, 3, 1
v_mul_u32_u24 v{t0}, {OS}, v{t0}
v_lshrrev_b32 v{t1}, 4, v0
v_mul_u32_u24 v{t1}, {GS}, v{t1}
v_add_u32 v{t0}, v{t0}, v{t1}
v_and_b32 v{t1}, 7, v0
v_lshl_add_u32 v{t0}, v{t1}, 4, v{t0}
s_mul_i32 s{sT0}, s{sTM}, {8*OS}
s_lshl_b32 s{sT1}, s{sSRC}, 8
s_add_u32 s{sT0}, s{sT0}, s{sT1}
s_lshl_b32 s{sT1}, s{sFN}, 7
s_add_u32 s{sT0}, s{sT0}, s{sT1}
v_add_u32 v{vP}, s{sT0}, v{t0}""")
    for t in range(1,4): a(f"v_add_u32 v{vP+t}, {2*OS*t}, v{vP}")
    a(f"s_mul_i32 s{sPoff}, s{sMB}, {MS}")

def gpass(p, nk, hfrag, WA, WB, rd, accA, accB, pack, vP, dma0, dma1, addr_upd, wait_mid, last):
    out=[]
    for half in (0,1):
        Wc = WA if half==0 else WB
        Wn = WB if half==0 else WA
        acc = accA if half==0 else accB
        oacc = accB if half==0 else accA
        mf=[]
        for k in range(nk):
            for tb in range(4):
                c = "0" if k==0 else vr(acc+4*tb)
                mf.append(f"{MF} {vr(acc+4*tb)}, {ar(Wc(k))}, {hfrag(k,tb)}, {c}")
        G=Gaps(mf); n=len(mf)
        vm=[]
        if half==0 and p>0:
            for tb in range(4): vm.append(([], f"buffer_store_dwordx4 {vr(pack+4*tb)}, v{vP+tb}, {sr(S_P)}, s{sPoff} offen sc1"))
        dm = dma0 if half==0 else dma1
        cv=[]
        if not (half==0 and p==0):
            o = 2 if half==0 else 0
            for tb in range(4):
                cv.append(f"v_cvt_pk_bf16_f32 v{pack+4*tb+o}, v{oacc+4*tb}, v{oacc+4*tb+1}")
                cv.append(f"v_cvt_pk_bf16_f32 v{pack+4*tb+o+1}, v{oacc+4*tb+2}, v{oacc+4*tb+3}")
        reads = [] if (half==1 and last) else [x for k in range(nk) for x in rd(1-half, k, Wn(k))]
        step = 4 if n>=48 else 2
        pos = 1
        if vm:
            cpos=2
            for tb in range(4):
                gp = cpos+ (4 if n>=48 else 2)
                G.put(vm[tb][1], gp, force=True)
                G.put(cv[2*tb], cpos); G.put(cv[2*tb+1], cpos+1)
                cpos = gp+1
            G.put(f"s_add_u32 s{sPoff}, s{sPoff}, {PS}", cpos)
            pos = cpos+2
            cv=[]
        for pre,txt in dm:
            while not G.room(pos,'g',1): pos+=1
            G.put(txt,pos,force=True)
            for j,s_ in enumerate(pre):
                q=pos-1
                assert G.room(q,'s',1), (p,half,pos)
                G.put(s_,q,force=True)
            pos+=step
        q=0
        for r_ in reads: q=G.put(r_,q)+1
        lastread=q
        q=2
        for c_ in cv: q=G.put(c_,q)
        q=lastread
        for u in addr_upd(half): q=G.put(u,q)+ (1 if u.startswith('s_') else 0)
        if half==0:
            G.put(wait_mid, n-2, force=True); G.put("s_barrier", n-1, force=True)
        else:
            G.put("s_waitcnt lgkmcnt(0)", n-1, force=True)
        out+=G.emit()
    return out
def gtail(a, accB, pack, vP):
    for tb in range(4):
        a(f"v_cvt_pk_bf16_f32 v{pack+4*tb+2}, v{accB+4*tb}, v{accB+4*tb+1}\nv_cvt_pk_bf16_f32 v{pack+4*tb+3}, v{accB+4*tb+2}, v{accB+4*tb+3}")
        a(f"buffer_store_dwordx4 {vr(pack+4*tb)}, v{vP+tb}, {sr(S_P)}, s{sPoff} offen sc1")

def role_F(a):
    ACC=64
    acc=lambda b,tb: ACC+(b*4+tb)*4
    vWdma=1; vXdma=2; vWrd=6; vXb=10; vXrd=12; vGdma=14; vGb=15; vGrd=19; vP=23; vHw=27; vHr=28; vBias=32; t0,t1,t2=29,30,31
    WS=lambda par,b: par*48+b*4
    XS=lambda par,tb: 96+par*16+tb*4
    HP=lambda k,tb: 128+(k*4+tb)*4
    XBASE=98304
    a("L_F:")
    a(f"""s_and_b32 s{sTM}, s{sW_}, 1
s_lshr_b32 s{sFN}, s{sW_}, 1
s_mul_i32 s{sT2}, s{sC}, 3
s_add_u32 s{sT2}, s{sT2}, s{sRHO}""")
    colswz(a, t2, t0, t1)
    a(f"""v_lshrrev_b32 v{t0}, 5, v0
v_bfe_u32 v{t1}, v0, 3, 2
v_lshl_add_u32 v{t0}, v{t0}, 3, v{t1}
s_lshl_b32 s{sT0}, s{sTM}, 4
s_lshl_b32 s{sT1}, s{sFN}, 2
s_add_u32 s{sT0}, s{sT0}, s{sT1}
v_add_u32 v{t0}, s{sT0}, v{t0}
v_mul_u32_u24 v{t0}, 9216, v{t0}
s_mul_i32 s{sT0}, s{sT2}, 768
v_add3_u32 v{vWdma}, v{t0}, v{t2}, s{sT0}""")
    a(f"""s_lshl_b32 s{sT0}, s{sMB}, 7
s_lshl_b32 s{sT1}, s{sW_}, 5
s_add_u32 s{sT0}, s{sT0}, s{sT1}
v_lshrrev_b32 v{t0}, 3, v0
v_add_u32 v{t0}, s{sT0}, v{t0}
v_mul_u32_u24 v{t0}, 1152, v{t0}
v_and_b32 v{t1}, 7, v0
v_lshrrev_b32 v{vXdma}, 4, v0
v_xor_b32 v{t1}, v{t1}, v{vXdma}
v_lshl_add_u32 v{vXdma}, v{t1}, 4, v{t0}
v_xor_b32 v{t1}, 4, v{t1}
v_lshl_add_u32 v{vXdma+1}, v{t1}, 4, v{t0}
v_add_u32 v{vXdma+1}, 9216, v{vXdma+1}
v_add_u32 v{vXdma+2}, 18432, v{vXdma}
v_add_u32 v{vXdma+3}, 18432, v{vXdma+1}""")
    a(f"""s_mul_i32 s{sT0}, s{sT2}, 768
s_mul_i32 s{sT1}, s{sFN}, 384
s_add_u32 s{sT0}, s{sT0}, s{sT1}
v_lshrrev_b32 v{t0}, 4, v0
v_lshl_add_u32 v{t0}, v{t0}, 3, s{sT0}
s_lshl_b32 s{sWwr}, s{sW_}, 10
s_lshl_b32 s{sX0}, s{sW_}, 12
s_add_u32 s{sX0}, s{sX0}, {XBASE}
s_add_u32 s{sX1}, s{sX0}, 16384
s_add_u32 s{sX2}, s{sX0}, 32768
s_waitcnt lgkmcnt(0)""")
    srd(a,S_X,4,2048*1152); srd(a,S_W,12,576*9216); srd(a,S_B,14,4608*2)
    for b in range(12): a(f"buffer_load_dwordx2 {vr(vBias+2*b,2)}, v{t0}, {sr(S_B)}, 0 offen offset:{32*b}")
    def xd(t, sx, soff): return ([f"s_add_u32 m0, s{sx}, {t*1024}"], f"buffer_load_dwordx4 v{vXdma+t}, {sr(S_X)}, {soff} offen lds")
    def wd(L, slotoff, soff): return ([f"s_add_u32 m0, s{sWwr}, {slotoff+L*3968}"], f"buffer_load_dwordx4 v{vWdma}, {sr(S_W)}, {soff} offen offset:{128*L} lds")
    def issue(lst):
        for pre,txt in lst:
            for s_ in pre: a(s_)
            a(txt)
    def setoff(s,v): a(f"s_mov_b32 s{s}, {v}")
    issue([xd(t,sX0,"0") for t in range(4)])
    issue([wd(L,0,"0") for L in range(6)])
    setoff(sWoff,294912); issue([wd(L,24576,f"s{sWoff}") for L in range(6)])
    setoff(sXoff,128); issue([xd(t,sX1,f"s{sXoff}") for t in range(4)])
    setoff(sWoff,2*294912); issue([wd(L,49152,f"s{sWoff}") for L in range(6)])
    setoff(sWoff,3*294912); issue([wd(L,73728,f"s{sWoff}") for L in range(6)])
    setoff(sXoff,256); issue([xd(t,sX2,f"s{sXoff}") for t in range(2)])
    setoff(sWoff,4*294912)
    srd(a,S_W2,16,4608*1152); srd(a,S_P,26,P_BYTES)
    for bb in range(4):
        trbase(a, vWrd+bb, bb, t0, t1)
    a(f"s_lshl_b32 s{sT0}, s{sFN}, 1")
    trbase(a, vGb, f"s{sT0}", t0, t1)
    a(f"""s_mul_i32 s{sT0}, s{sFN}, 12288
s_mul_i32 s{sT1}, s{sFN}, 24576""")
    for bb in range(4): a(f"v_add_u32 v{vWrd+bb}, s{sT0}, v{vWrd+bb}")
    a(f"""v_xor_b32 v{vGb+2}, 32, v{vGb}
s_sub_u32 s{sT0}, 24576, s{sT1}
v_add_u32 v{vGb+1}, s{sT0}, v{vGb}
v_add_u32 v{vGb+3}, s{sT0}, v{vGb+2}
v_add_u32 v{vGb}, s{sT1}, v{vGb}
v_add_u32 v{vGb+2}, s{sT1}, v{vGb+2}""")
    for i in range(4): a(f"v_add_u32 v{vGrd+i}, 49152, v{vGb+i}")
    a(f"""v_and_b32 v{t0}, 15, v0
v_bfe_u32 v{t1}, v0, 1, 3
v_lshrrev_b32 v{vXb}, 4, v0
v_xor_b32 v{t1}, v{t1}, v{vXb}
v_lshlrev_b32 v{t1}, 4, v{t1}
v_lshl_add_u32 v{t0}, v{t0}, 7, v{t1}
s_lshl_b32 s{sT0}, s{sTM}, 13
s_lshl_b32 s{sT1}, s{sW_}, 12
s_sub_u32 s{sT0}, s{sT0}, s{sT1}
v_xor_b32 v{t1}, 64, v{t0}
v_add_u32 v{vXb}, s{sT0}, v{t0}
v_add_u32 v{vXb+1}, s{sT0}, v{t1}
v_add_u32 v{vXrd}, s{sX0}, v{vXb}
v_add_u32 v{vXrd+1}, s{sX0}, v{vXb+1}""")
    a(f"""s_mul_i32 s{sT0}, s{sT2}, 384
s_mul_i32 s{sT1}, s{sW_}, 96
s_add_u32 s{sT0}, s{sT0}, s{sT1}
v_lshrrev_b32 v{t0}, 3, v0
v_add_u32 v{t0}, s{sT0}, v{t0}
v_mul_u32_u24 v{t0}, 1152, v{t0}
v_add_u32 v{vGdma}, v{t0}, v{t2}
s_mul_i32 s{sGwr}, s{sW_}, 12288""")
    pst_setup(a, vP, t0, t1)
    a(f"""s_lshl_b32 s{sT0}, s{sW_}, 13
s_add_u32 s{sT0}, s{sT0}, {XBASE}
v_lshl_add_u32 v{vHw}, v0, 4, s{sT0}
v_xor_b32 v{vHr}, 16384, v{vHw}""")
    a("s_waitcnt vmcnt(34)")
    for b in range(12):
        r=acc(b,0)
        a(f"v_lshlrev_b32 v{r}, 16, v{vBias+2*b}\nv_and_b32 v{r+1}, 0xffff0000, v{vBias+2*b}\nv_lshlrev_b32 v{r+2}, 16, v{vBias+2*b+1}\nv_and_b32 v{r+3}, 0xffff0000, v{vBias+2*b+1}")
        for tb in range(1,4):
            for i in range(4): a(f"v_mov_b32 v{acc(b,tb)+i}, v{r+i}")
    def wreads(par, slotoff):
        return [f"ds_read_b64_tr_b16 {ar(WS(par,b)+2*j,2)}, v{vWrd+(b&3)} offset:{slotoff+(b>>2)*4096+j*2048}" for b in range(12) for j in range(2)]
    def xreads(par): return [f"ds_read_b128 {ar(XS(par,tb))}, v{vXrd+par} offset:{tb*2048}" for tb in range(4)]
    a("s_waitcnt vmcnt(24)\ns_barrier")
    stamp(a,1)
    a.extend(xreads(0)+wreads(0,0))
    a(f"v_add_u32 v{vXrd}, s{sX1}, v{vXb}")
    a(f"s_mov_b32 s{sIt}, 0\ns_waitcnt vmcnt(18) lgkmcnt(0)\ns_barrier")
    stamp(a,2)
    def fstep(par, dmas, reads, upd, wait, bar=True):
        mf=[f"{MF} {vr(acc(b,tb))}, {ar(WS(par,b))}, {ar(XS(par,tb))}, {vr(acc(b,tb))}" for b in range(12) for tb in range(4)]
        G=Gaps(mf); pos=2 if len(dmas)<=8 else 1
        step = 5 if len(dmas)<=8 else 4
        for pre,txt in dmas:
            G.put(txt,pos,force=True)
            for s_ in pre: G.put(s_,pos-1,force=True)
            pos+=step
        q=0
        for r_ in reads: q=G.put(r_,q)+1
        if upd: q=max(q,pos-step+1)
        for u in upd: q=G.put(u,q)+(1 if u.startswith('s_') else 0)
        assert q<=46, q
        if wait: G.put(wait,46,force=True)
        if bar: G.put("s_barrier",47,force=True)
        return G.emit()
    tog=[f"v_xor_b32 v{vWrd+bb}, 0xc000, v{vWrd+bb}" for bb in range(4)]
    rot=[f"s_mov_b32 s{sT0}, s{sX0}",f"s_mov_b32 s{sX0}, s{sX1}",f"s_mov_b32 s{sX1}, s{sX2}",f"s_mov_b32 s{sX2}, s{sT0}"]
    def mix(w,x): return w[:2]+x[:1]+w[2:4]+x[1:]+w[4:]
    ev_upd = tog+[f"v_add_u32 v{vXrd+1}, s{sX1}, v{vXb+1}"]
    body = fstep(0, mix([wd(L,0,f"s{sWoff}") for L in range(6)],[xd(t,sX2,f"s{sXoff}") for t in (2,3)]), xreads(1)+wreads(1,24576),
                 ev_upd+[f"s_add_u32 s{sWoff}, s{sWoff}, 294912", f"s_add_u32 s{sXoff}, s{sXoff}, 128"], "s_waitcnt vmcnt(16) lgkmcnt(0)")
    body += fstep(1, mix([wd(L,24576,f"s{sWoff}") for L in range(6)],[xd(t,sX0,f"s{sXoff}") for t in (0,1)]), xreads(0)+wreads(0,0),
                 [f"v_add_u32 v{vXrd}, s{sX2}, v{vXb}", f"s_add_u32 s{sWoff}, s{sWoff}, 294912", f"s_xor_b32 s{sWwr}, s{sWwr}, 0xc000"]+rot+[f"s_add_u32 s{sIt}, s{sIt}, 1", f"s_cmp_lt_u32 s{sIt}, 7"],
                 "s_waitcnt vmcnt(16) lgkmcnt(0)")
    assert not check_loop(body), check_loop(body)
    a(".p2align 3\nL_Floop:"); a.extend(body); a("s_cbranch_scc1 L_Floop")
    def gd(t, slot, p): return ([f"s_add_u32 m0, s{sGwr}, {slot+t*1024}", f"s_mov_b32 s{sGoff}, {128*p+t*9216}"], f"buffer_load_dwordx4 v{vGdma}, {sr(S_W2)}, s{sGoff} offen lds")
    SL=[49152,0,98304]
    a.extend(fstep(0, [], xreads(1)+wreads(1,24576), ev_upd, "s_waitcnt vmcnt(8) lgkmcnt(0)"))
    a.extend(fstep(1, [gd(t,SL[0],0) for t in range(12)], xreads(0)+wreads(0,0), [], "s_waitcnt vmcnt(12) lgkmcnt(0)"))
    a.extend(fstep(0, [], xreads(1)+wreads(1,24576), [], "s_waitcnt lgkmcnt(0)"))
    a.extend(fstep(1, [gd(t,SL[1],1) for t in range(12)], [], [], None, bar=False))
    stamp(a,3)
    def grd(b_, k, dst):
        return [f"ds_read_b64_tr_b16 {ar(dst+2*j,2)}, v{vGrd+2*b_+(k//6)} offset:{(k%6)*4096+j*2048}" for j in range(2)]
    def hreads(r): return [f"ds_read_b128 {ar(HP(2*r+(i>>2),i&3))}, v{vHr} offset:{(r&1)*32768+i*1024}" for i in range(8)]
    for r in range(3):
        extra = hreads(r-1) if r>0 else []
        if r==2: extra = extra + [x for k in range(12) for x in grd(0,k,WS(0,k))]
        per = (len(extra)+7)//8
        for i in range(8):
            kp=2*r+(i>>2); tb=i&3; A_=acc(2*kp,tb); B_=acc(2*kp+1,tb)
            a.extend(extra[i*per:(i+1)*per])
            for q in list(range(A_,A_+4))+list(range(B_,B_+4)): a(f"v_mul_f32 v{q}, v{q}, |v{q}|")
            a(f"v_cvt_pk_bf16_f32 v{A_}, v{A_}, v{A_+1}\nv_cvt_pk_bf16_f32 v{A_+1}, v{A_+2}, v{A_+3}\nv_cvt_pk_bf16_f32 v{A_+2}, v{B_}, v{B_+1}\nv_cvt_pk_bf16_f32 v{A_+3}, v{B_+2}, v{B_+3}")
            for q in range(A_,A_+4): a(f"v_pk_max_i16 v{q}, v{q}, 0")
            a(f"ds_write_b128 v{vHw}, {vr(A_)} offset:{(r&1)*32768+i*1024}")
        a("s_waitcnt vmcnt(12) lgkmcnt(0)\ns_barrier" if r==1 else "s_waitcnt lgkmcnt(0)\ns_barrier")
    a.extend(hreads(2))
    a("s_waitcnt lgkmcnt(0)\ns_barrier")
    stamp(a,4)
    hfrag=lambda k,tb: vr(acc(2*k,tb)) if k<6 else ar(HP(k-6,tb))
    accA=acc(1,0); accB=acc(3,0); pack=acc(5,0)
    for p in range(9):
        dma0=[gd(t,SL[2],2) for t in range(12)] if p==0 else []
        dma1=[gd(t,SL[p%3],p+3) for t in range(12)] if p+3<=8 else []
        def upd(half, p=p):
            if p==8: return []
            o = 0 if half==0 else 2
            return [f"v_add_u32 v{vGrd+o+i}, {SL[(p+1)%3]}, v{vGb+o+i}" for i in range(2)]
        if p==0: n=12
        elif p==1: n=12+4
        else:
            n = 4 + (12 if p+2<=8 else 0) + 4
        wait=f"s_waitcnt vmcnt({n}) lgkmcnt(0)"
        a.extend(gpass(p,12,hfrag,lambda k:WS(0,k),lambda k:WS(1,k),grd,accA,accB,pack,vP,dma0,dma1,upd,wait,p==8))
    gtail(a,accB,pack,vP)
    stamp(a,5)
    a("s_waitcnt vmcnt(0)")
    stamp(a,6)
    stamps_out(a,7)
    a("s_endpgm")

def role_A(a):
    vWdma=1; vXdma=8; vWm=13; vWl=14; vXrd=16; t0,t1,t2,t3=18,19,20,21
    vGdma=22
    vCol=27
    QB=32; KB=96; VB=192
    Qa=lambda tb: QB+8*tb; Qb=lambda tb: QB+8*tb+4
    Ka=lambda tb: KB+12*tb; Lt=lambda tb: KB+12*tb+4; Kb=lambda tb: KB+12*tb+8
    Vt=lambda h,tb: VB+(h*2+(tb&1))*16+(tb>>1)*4
    WSn=lambda par,t: par*28+t*4
    XSn=lambda par,tb: 56+par*36+tb*4
    HA=lambda t: 128+t*4
    VL=148
    WSL=28672; XB=4*WSL; XSL=18432; VLB=XB+2*XSL
    a("L_A:")
    a(f"""s_and_b32 s{sTM}, s{sW_}, 1
s_lshr_b32 s{sFN}, s{sW_}, 1""")
    for t in range(7):
        a(f"""s_mul_i32 s{sT0}, s{sW_}, 7
s_add_u32 s{sT0}, s{sT0}, {t}
s_mul_i32 s{sT1}, s{sT0}, 57
s_lshr_b32 s{sT1}, s{sT1}, 9
s_mul_i32 s{sT2}, s{sT1}, 9
s_sub_u32 s{sT0}, s{sT0}, s{sT2}
s_lshl_b32 s{sT0}, s{sT0}, 6
v_add_u32 v{t0}, s{sT0}, v0
v_mul_u32_u24 v{t1}, 3641, v{t0}
v_lshrrev_b32 v{t1}, 16, v{t1}
v_mul_u32_u24 v{t2}, 18, v{t1}
v_sub_u32 v{t0}, v{t0}, v{t2}
v_bfe_u32 v{t2}, v{t1}, 2, 2
v_and_b32 v{t3}, 3, v{t1}
v_lshl_add_u32 v{t2}, v{t2}, 3, v{t3}
v_lshrrev_b32 v{t1}, 4, v{t1}
v_lshl_add_u32 v{t1}, v{t1}, 2, v{t2}
v_mul_u32_u24 v{t1}, 3456, v{t1}
v_lshl_add_u32 v{t0}, v{t0}, 4, v{t1}
s_mul_i32 s{sT0}, s{sT1}, 1152
s_mul_i32 s{sT2}, s{sC}, 288
s_add_u32 s{sT0}, s{sT0}, s{sT2}
s_cmp_eq_u32 s{sT1}, 3
s_cselect_b32 s{sT0}, 0x40000000, s{sT0}
v_add_u32 v{vWdma+t}, s{sT0}, v{t0}""")
    a(f"""s_lshl_b32 s{sT0}, s{sMB}, 7
s_lshl_b32 s{sT1}, s{sW_}, 5
s_add_u32 s{sT1}, s{sT0}, s{sT1}
v_lshrrev_b32 v{t0}, 3, v0
v_lshl_add_u32 v{t2}, v{t0}, 1, s{sT1}
v_mul_u32_u24 v{t2}, 1152, v{t2}
v_and_b32 v{t1}, 7, v0
v_lshrrev_b32 v{t3}, 4, v0
v_xor_b32 v{t1}, v{t1}, v{t3}
v_lshl_add_u32 v{vXdma}, v{t1}, 4, v{t2}
v_xor_b32 v{t3}, 4, v{t1}
v_lshl_add_u32 v{vXdma+1}, v{t3}, 4, v{t2}
v_add_u32 v{vXdma+1}, {16*1152}, v{vXdma+1}
v_add_u32 v{vXdma+2}, 1152, v{vXdma}
v_add_u32 v{vXdma+3}, 1152, v{vXdma+1}
s_sub_u32 s{sT1}, s{sT0}, 16
s_max_i32 s{sT1}, s{sT1}, 0
s_add_u32 s{sT1}, s{sT1}, 1
s_sub_u32 s{sT1}, s{sT1}, s{sTM}
v_lshl_add_u32 v{t2}, v{t0}, 1, s{sT1}
v_mul_u32_u24 v{t2}, 1152, v{t2}
s_lshl_b32 s{sT1}, s{sTM}, 2
v_xor_b32 v{t3}, s{sT1}, v{t1}
v_lshl_add_u32 v{vXdma+4}, v{t3}, 4, v{t2}
s_mul_i32 s{sWwr}, s{sW_}, 7168
s_lshl_b32 s{sX0}, s{sW_}, 12
s_add_u32 s{sX0}, s{sX0}, {XB}
s_lshl_b32 s{sX1}, s{sTM}, 10
s_add_u32 s{sX1}, s{sX1}, {XB+16384}
s_waitcnt lgkmcnt(0)""")
    srd(a,S_X,4,2048*1152); srd(a,S_W,6,576*3456)
    def xd(t, slotoff, soff):
        m = f"s_add_u32 m0, s{sX0}, {slotoff+t*1024}" if t<4 else f"s_add_u32 m0, s{sX1}, {slotoff}"
        return ([m], f"buffer_load_dwordx4 v{vXdma+t}, {sr(S_X)}, {soff} offen lds")
    def wd(t, slotoff, soff): return ([f"s_add_u32 m0, s{sWwr}, {slotoff+t*1024}"], f"buffer_load_dwordx4 v{vWdma+t}, {sr(S_W)}, {soff} offen lds")
    def issue(lst):
        for pre,txt in lst:
            for s_ in pre: a(s_)
            a(txt)
    def setoff(s,v): a(f"s_mov_b32 s{s}, {v}")
    KS=32*3456
    issue([xd(t,0,"0") for t in range(5)])
    issue([wd(t,0,"0") for t in range(7)])
    setoff(sWoff,KS); issue([wd(t,WSL,f"s{sWoff}") for t in range(7)])
    setoff(sWoff,2*KS); issue([wd(t,2*WSL,f"s{sWoff}") for t in range(7)])
    setoff(sXoff,128); issue([xd(t,XSL,f"s{sXoff}") for t in range(5)])
    setoff(sWoff,3*KS); issue([wd(t,3*WSL,f"s{sWoff}") for t in range(7)])
    setoff(sWoff,4*KS); setoff(sXoff,256)
    srd(a,S_W2,8,576*1152); srd(a,S_P,26,P_BYTES)
    a(f"""v_lshrrev_b32 v{t0}, 2, v0
v_mul_u32_u24 v{t0}, 288, v{t0}
s_mul_i32 s{sT0}, s{sW_}, 72
v_add_u32 v{t0}, s{sT0}, v{t0}
v_and_b32 v{t1}, 3, v0
v_lshl_add_u32 v{vWm}, v{t1}, 3, v{t0}
v_add_u32 v{t2}, 1, v{t1}
v_cmp_eq_u32 vcc, 2, v{t1}
v_cndmask_b32 v{t2}, v{t2}, 0, vcc
v_mul_u32_u24 v{t2}, 9216, v{t2}
v_add3_u32 v{vWl}, v{t0}, v{t2}, 32
v_add_u32 v{vWl+1}, 4608, v{vWl}
v_mov_b32 v{t2}, 27648
v_cmp_eq_u32 vcc, 3, v{t1}
v_cndmask_b32 v{vWl}, v{vWl}, v{t2}, vcc
v_cndmask_b32 v{vWl+1}, v{vWl+1}, v{t2}, vcc""")
    a(f"""v_and_b32 v{t0}, 15, v0
v_bfe_u32 v{t1}, v0, 1, 3
v_lshrrev_b32 v{t2}, 4, v0
v_xor_b32 v{t1}, v{t1}, v{t2}
v_lshlrev_b32 v{t1}, 4, v{t1}
v_lshl_add_u32 v{t0}, v{t0}, 7, v{t1}
v_add_u32 v{vXrd}, {XB}, v{t0}
v_xor_b32 v{vXrd+1}, 64, v{vXrd}""")
    colswz(a, vCol, t0, t1)
    a(f"""s_mul_i32 s{sT0}, s{sC}, 144
s_mul_i32 s{sT1}, s{sW_}, 36
s_add_u32 s{sT1}, s{sT0}, s{sT1}
v_lshrrev_b32 v{t0}, 3, v0
v_add_u32 v{t1}, s{sT1}, v{t0}
v_mul_u32_u24 v{t1}, 1152, v{t1}
v_add_u32 v{vGdma}, v{t1}, v{vCol}
v_add_u32 v{vGdma+1}, {8*1152}, v{vGdma}
v_add_u32 v{vGdma+2}, {20*1152}, v{vGdma}
v_add_u32 v{vGdma+3}, {28*1152}, v{vGdma}
s_mul_i32 s{sT1}, s{sTM}, 72
s_add_u32 s{sT1}, s{sT1}, s{sT0}
s_add_u32 s{sT1}, s{sT1}, 16
v_lshrrev_b32 v{t1}, 5, v0
v_mul_u32_u24 v{t1}, 36, v{t1}
v_and_b32 v{t0}, 3, v{t0}
v_add3_u32 v{t1}, v{t1}, v{t0}, s{sT1}
v_mul_u32_u24 v{t1}, 1152, v{t1}
v_add_u32 v{vGdma+4}, v{t1}, v{vCol}
s_lshl_b32 s{sGwr}, s{sW_}, 12
s_lshl_b32 s{sSl}, s{sTM}, 10
s_add_u32 s{sSl}, s{sSl}, 16384""")
    a(f"""s_mul_i32 s{sT0}, s{sW_}, 2304
s_add_u32 s{sT0}, s{sT0}, {VLB}
v_lshl_add_u32 v{t0}, v0, 4, s{sT0}
v_mov_b32 v{t1}, 0x3f80
ds_write2_b32 v{t0}, v{t1}, v{t1} offset0:1 offset1:3
v_add_u32 v{t0}, 1024, v{t0}
ds_write2_b32 v{t0}, v{t1}, v{t1} offset0:1 offset1:3
v_add_u32 v{t0}, 256, v{t0}
ds_write2_b32 v{t0}, v{t1}, v{t1} offset0:1 offset1:3""")
    for r in range(QB,256): a(f"v_mov_b32 v{r}, 0")
    for r in range(128,148): a(f"v_accvgpr_write_b32 a{r}, 0")
    moff=[0,40,9216,9216+40,18432,18432+40]
    def wreads(par, slotoff):
        o=[f"ds_read_b64_tr_b16 {ar(WSn(par,t)+2*j,2)}, v{vWm} offset:{slotoff+moff[t]+j*4608}" for t in range(6) for j in range(2)]
        return o+[f"ds_read_b64_tr_b16 {ar(WSn(par,6)+2*j,2)}, v{vWl+j} offset:{slotoff}" for j in range(2)]
    def xreads(par): return [f"ds_read_b128 {ar(XSn(par,tb))}, v{vXrd+par} offset:{tb*2048}" for tb in range(9)]
    a("s_waitcnt vmcnt(26)\ns_barrier")
    stamp(a,1)
    a.extend(xreads(0)+wreads(0,0))
    a(f"v_add_u32 v{vXrd}, {XSL}, v{vXrd}")
    a(f"s_mov_b32 s{sIt}, 0\ns_mov_b32 s{sX2}, {XSL}\ns_mov_b32 s{sT2}, {2*WSL}\ns_waitcnt vmcnt(19) lgkmcnt(0)\ns_barrier")
    stamp(a,2)
    def qstep(par, dmas, reads, upd, wait, bar=True):
        mf=[]
        for t,(fn_,hidx) in enumerate(((Qa,None),(Qb,None),(Ka,0),(Kb,2),(lambda tb:Vt(0,tb),3),(lambda tb:Vt(1,tb),4),(Lt,1))):
            w=ar(WSn(par,t))
            for tb in range(9):
                if tb==8 and hidx is None: continue
                d = vr(fn_(tb)) if tb<8 else ar(HA(hidx))
                x=ar(XSn(par,tb))
                mf.append(f"{MF} {d}, {x}, {w}, {d}" if t in (4,5) else f"{MF} {d}, {w}, {x}, {d}")
        G=Gaps(mf); n=len(mf); pos=1
        step = 7 if len(dmas)<=7 else 4
        for pre,txt in dmas:
            G.put(txt,pos,force=True)
            for s_ in pre: G.put(s_,pos-1,force=True)
            pos+=step
        q=0
        for r_ in reads: q=G.put(r_,q)+1
        if upd: q=max(q,pos-step+1)
        for u in upd: q=G.put(u,q)+(1 if u.startswith('s_') else 0)
        assert q<=n-2, q
        if wait: G.put(wait,n-2,force=True)
        if bar: G.put("s_barrier",n-1,force=True)
        return G.emit()
    ev_upd=[f"v_add_u32 v{r}, s{sT2}, v{r}" for r in (vWm,vWl,vWl+1)]+[f"v_add_u32 v{vXrd+1}, s{sX2}, v{vXrd+1}"]
    body = qstep(0, [wd(t,0,f"s{sWoff}") for t in range(7)], xreads(1)+wreads(1,WSL),
                 ev_upd+[f"s_add_u32 s{sWoff}, s{sWoff}, {KS}"], "s_waitcnt vmcnt(14) lgkmcnt(0)")
    body += qstep(1, [xd(t,0,f"s{sXoff}") for t in range(5)]+[wd(t,WSL,f"s{sWoff}") for t in range(7)], xreads(0)+wreads(0,0),
                 [f"v_subrev_u32 v{vXrd}, s{sX2}, v{vXrd}", f"s_add_u32 s{sWoff}, s{sWoff}, {KS}", f"s_add_u32 s{sXoff}, s{sXoff}, 128",
                  f"s_add_u32 s{sWwr}, s{sWwr}, s{sT2}", f"s_add_u32 s{sX0}, s{sX0}, s{sX2}", f"s_add_u32 s{sX1}, s{sX1}, s{sX2}",
                  f"s_sub_u32 s{sT2}, 0, s{sT2}", f"s_sub_u32 s{sX2}, 0, s{sX2}", f"s_add_u32 s{sIt}, s{sIt}, 1", f"s_cmp_lt_u32 s{sIt}, 7"],
                 "s_waitcnt vmcnt(19) lgkmcnt(0)")
    assert not check_loop(body), check_loop(body)
    a(".p2align 3\nL_Aloop:"); a.extend(body); a("s_cbranch_scc1 L_Aloop")
    GSL=18432
    def gd(t, p):
        slot=(p%6)*GSL
        m = f"s_add_u32 m0, s{sGwr}, {slot+t*1024}" if t<4 else f"s_add_u32 m0, s{sSl}, {slot}"
        pre=[m]+([f"s_mov_b32 s{sGoff}, {128*p}"] if t==0 else [])
        return (pre, f"buffer_load_dwordx4 v{vGdma+t}, {sr(S_W2)}, s{sGoff} offen lds")
    a.extend(qstep(0, [], xreads(1)+wreads(1,WSL), ev_upd, "s_waitcnt vmcnt(7) lgkmcnt(0)"))
    a.extend(qstep(1, [], xreads(0)+wreads(0,0), [], "s_waitcnt vmcnt(0) lgkmcnt(0)"))
    a.extend(qstep(0, [], xreads(1)+wreads(1,WSL), [], "s_waitcnt lgkmcnt(0)"))
    a.extend(qstep(1, [gd(t,p) for p in range(2) for t in range(5)], [], [], None, bar=False))
    stamp(a,3)
    MO,MP,ME,MD=2,6,10,14
    AM=28
    vVw,vVr,vOw,vOl = 1,30,31,27
    NEG=hex(f2u(-1e30))
    a(f"""v_and_b32 v{t0}, 15, v0
v_lshrrev_b32 v{t1}, 4, v0
v_lshlrev_b32 v{t1}, 2, v{t1}
v_sub_u32 v{t2}, v{t0}, v{t1}
v_mov_b32 v{t3}, {NEG}
s_cmp_eq_u32 s{sMB}, 0
s_cselect_b32 s{sT0}, {NEG}, 0
v_mov_b32 v{AM}, 0
v_mov_b32 v{AM+1}, 0""")
    for i in range(4):
        a(f"""v_subrev_u32 v{t0}, {i}, v{t2}
v_cmp_gt_u32 vcc, 8, v{t0}
v_cndmask_b32 v{MO+i}, v{t3}, 0, vcc
v_cmp_ge_i32 vcc, -9, v{t0}
v_cndmask_b32 v{MP+i}, v{t3}, 0, vcc
v_min_f32 v{ME+i}, s{sT0}, v{MP+i}
v_cmp_gt_i32 vcc, 0, v{t0}
v_cndmask_b32 v{MD+i}, v{t3}, 0, vcc
v_mov_b32 v{t1}, {hex(0xffff<<(16*(i&1)))}
v_cndmask_b32 v{t1}, v{t1}, 0, vcc
v_or_b32 v{AM+(i>>1)}, v{AM+(i>>1)}, v{t1}
v_cmp_gt_u32 vcc, 32, v0
v_cndmask_b32 v{MD+i}, v{t3}, v{MD+i}, vcc
v_min_f32 v{MD+i}, s{sT0}, v{MD+i}""")
    a(f"""s_mul_i32 s{sT0}, s{sW_}, 2304
s_add_u32 s{sT0}, s{sT0}, {VLB}
v_and_b32 v{t0}, 15, v0
v_lshl_add_u32 v{vVw}, v{t0}, 4, s{sT0}
v_lshrrev_b32 v{t0}, 2, v0
v_lshl_add_u32 v{vVr}, v{t0}, 4, s{sT0}""")
    a(f"""s_lshl_b32 s{sT0}, s{sW_}, 13
s_add_u32 s{sT0}, s{sT0}, {XB}
v_lshl_add_u32 v{vOw}, v0, 4, s{sT0}
s_lshl_b32 s{sT0}, s{sW_}, 7
s_add_u32 s{sT0}, s{sT0}, {XB+32768}
v_and_b32 v{t0}, 15, v0
v_lshl_add_u32 v{vOl}, v{t0}, 3, s{sT0}""")
    cvt=lambda d,s0: f"v_cvt_pk_bf16_f32 v{d}, v{s0}, v{s0+1}"
    pend=[gd(t,p) for p in range(2,6) for t in range(5)]
    def dma_some(n):
        for _ in range(n):
            if pend: issue([pend.pop(0)])
    for tb in range(8):
        for q in range(6): a(cvt(Ka(tb)+q, Ka(tb)+2*q))
        dma_some(1)
    KH=Ka(0)+6
    T=Ka(1)+6
    for q in range(6):
        a(f"v_accvgpr_read_b32 v{T}, a{128+2*q}\nv_accvgpr_read_b32 v{T+1}, a{129+2*q}"); a(cvt(KH+q,T))
    Kp=lambda tb: KH if tb==8 else Ka(tb)
    a("s_mov_b32 exec_lo, 0xffff0000\ns_mov_b32 exec_hi, 0")
    for tb in range(9):
        if tb in (4,8): a(f"v_add_u32 v{vVw}, 1024, v{vVw}")
        a(f"ds_write2_b32 v{vVw}, v{Kp(tb)+2}, v{Kp(tb)+3} offset0:{(tb&3)*64} offset1:{(tb&3)*64+2}")
    a("s_mov_b64 exec, -1")
    for tb in range(8):
        r=Qa(tb)
        a(cvt(r,r)); a(cvt(r+1,r+2)); a(cvt(r+7,r+6)); a(cvt(r+6,r+4))
        for q in range(2,6): a(f"v_mov_b32 v{r+q}, 0")
        dma_some(1)
    a("s_waitcnt lgkmcnt(0)")
    for h in range(2):
        for par in range(2):
            base=VL+(h*2+par)*10
            for s_,tb in enumerate([8]+[2*i+par for i in range(4)]):
                a(f"ds_read_b64_tr_b16 {ar(base+2*s_,2)}, v{vVr} offset:{tb*256+h*8}")
    for tb in range(8):
        a(f"v_permlane32_swap_b32 v{Ka(tb)+2}, v{Qa(tb)+2}\nv_permlane32_swap_b32 v{Ka(tb)+3}, v{Qa(tb)+5}")
    for h in range(2):
        for q in range(4): a(f"v_accvgpr_read_b32 v{T+q}, a{HA(3+h)+q}")
        for par in range(2):
            r=Vt(h,par)
            a(cvt(r+3,r+2)); a(cvt(r+2,r))
            for q in range(4,10): a(cvt(r+q, r+4+2*(q-4)))
            a(cvt(r,T)); a(cvt(r+1,T+2))
            dma_some(1)
    assert not pend
    c_=18**-0.5*math.log2(math.e)
    a(f"s_mov_b32 s{sT0}, {hex(f2u(c_))}\ns_mov_b32 s{sT1}, {hex(f2u(-c_))}\ns_waitcnt lgkmcnt(0)")
    free6=[Ka(tb)+6 for tb in range(1,8)]+[VB+16*q+10 for q in range(4)]
    def combo(tb,h,X,Y):
        So=X; m=X+4; m2=X+5; Sp=Y
        prev = 8 if tb<2 else tb-2
        mp = MP if tb>=2 else (ME if tb==0 else MD)
        q=vr(Qa(tb)+4*h); Ol=Qa(tb)+4*h
        vw=Vt(h,tb&1)+2*(tb>>1); vl=VL+(h*2+(tb&1))*10+2*(tb>>1)
        s=[]
        s.append(f"{MF} {vr(So)}, {vr(Kp(tb)+2*h)}, {q}, {vr(MO)}")
        s.append(f"{MF} {vr(Sp)}, {vr(Kp(prev)+2*h)}, {q}, {vr(mp)}")
        s+= [f"v_max_f32 v{So+i}, v{So+i}, v{Sp+i}" for i in range(4)]
        s+= [f"v_max3_f32 v{m2}, v{So}, v{So+1}, v{So+2}", f"v_max_f32 v{m}, v{m2}, v{So+3}", f"v_max_f32 v{m2}, v{m2}, v{So+3}",
             f"v_permlane32_swap_b32 v{m}, v{m2}", f"v_max_f32 v{Y+4}, v{m}, v{m2}", f"v_max_f32 v{m}, v{m}, v{m2}",
             f"v_permlane16_swap_b32 v{m}, v{Y+4}", f"v_max_f32 v{m}, v{m}, v{Y+4}", f"v_mul_f32 v{m}, s{sT1}, v{m}"]
        s+= [f"v_fma_f32 v{So+i}, v{So+i}, s{sT0}, v{m}" for i in range(4)]
        s+= [f"v_exp_f32 v{So+i}, v{So+i}" for i in range(4)]
        s+= [cvt(Sp,So), cvt(Sp+1,So+2), f"v_and_b32 v{Sp+2}, v{Sp}, v{AM}", f"v_and_b32 v{Sp+3}, v{Sp+1}, v{AM+1}",
             f"v_xor_b32 v{Sp}, v{Sp}, v{Sp+2}", f"v_xor_b32 v{Sp+1}, v{Sp+1}, v{Sp+3}"]
        s.append(f"{MF} {vr(Ol)}, {ar(vl)}, {vr(Sp)}, 0")
        s.append(f"{MF} {vr(So)}, {vr(vw)}, {vr(Sp)}, 0")
        s.append(f"v_rcp_f32 v{m}, v{Ol+2}")
        s+= [f"v_mul_f32 v{Ol+i}, v{Ol+i}, v{m}" for i in range(2)]+[f"v_mul_f32 v{So+i}, v{So+i}, v{m}" for i in range(4)]
        return s
    for i in range(4):
        jobs=[(2*i+par,h) for par in range(2) for h in range(2)]
        st=[combo(tb,h,free6[2*k],free6[2*k+1]) for k,(tb,h) in enumerate(jobs)]
        for z in range(len(st[0])):
            for s in st: a(s[z])
        for par in range(2):
            tb=2*i+par; Xa=free6[4*par]; Xb=free6[4*par+2]; O=free6[8+par]; r=Qa(tb)
            a(cvt(O,Xa)); a(cvt(O+1,Xa+2)); a(cvt(O+2,Xb)); a(cvt(O+3,Xb+2)); a(cvt(O+4,r)); a(cvt(O+5,r+4))
            a(f"ds_write_b128 v{vOw}, {vr(O)} offset:{tb*1024}")
            a(f"ds_write_b64 v{vOl}, {vr(O+4,2)} offset:{tb*512}")
    vGb=2; vGrd=4; vP=6; vOr=10; vOr2=11
    OF=lambda k,tb: 56+(k*4+tb)*4
    WA=lambda k: k*4; WB=lambda k: 20+k*4
    a(f"s_lshl_b32 s{sT0}, s{sFN}, 1")
    trbase(a, vGb, f"s{sT0}", t0, t1)
    a(f"v_xor_b32 v{vGb+1}, 32, v{vGb}\nv_mov_b32 v{vGrd}, v{vGb}\nv_mov_b32 v{vGrd+1}, v{vGb+1}")
    pst_setup(a, vP, t0, t1)
    a(f"""v_and_b32 v{t0}, 1, v0
v_bfe_u32 v{t1}, v0, 1, 3
v_lshrrev_b32 v{t2}, 4, v0
v_lshlrev_b32 v{t3}, 10, v{t0}
v_lshl_add_u32 v{t3}, v{t1}, 4, v{t3}
v_lshl_add_u32 v{t3}, v{t2}, 8, v{t3}
s_lshl_b32 s{sT0}, s{sTM}, 12
s_add_u32 s{sT0}, s{sT0}, {XB}
v_add_u32 v{vOr}, s{sT0}, v{t3}
v_lshlrev_b32 v{t3}, 9, v{t0}
v_lshl_add_u32 v{t3}, v{t1}, 3, v{t3}
v_lshl_add_u32 v{t3}, v{t2}, 7, v{t3}
s_lshl_b32 s{sT0}, s{sTM}, 11
s_add_u32 s{sT0}, s{sT0}, {XB+32768}
v_add_u32 v{vOr2}, s{sT0}, v{t3}""")
    for r in [WA(4)+2,WA(4)+3,WB(4)+2,WB(4)+3]+[OF(4,tb)+q for tb in range(4) for q in (2,3)]: a(f"v_accvgpr_write_b32 a{r}, 0")
    def grd(b_,k,dst):
        return [f"ds_read_b64_tr_b16 {ar(dst+2*j,2)}, v{vGrd+b_} offset:{k*4096+j*2048}" for j in range(2 if k<4 else 1)]
    a("s_waitcnt vmcnt(0) lgkmcnt(0)\ns_barrier")
    for k in range(4):
        for tb in range(4): a(f"ds_read_b128 {ar(OF(k,tb))}, v{vOr} offset:{k*8192+(tb>>1)*2048+(tb&1)*128}")
    for tb in range(4): a(f"ds_read_b64 {ar(OF(4,tb),2)}, v{vOr2} offset:{(tb>>1)*1024+(tb&1)*64}")
    for k in range(5): a.extend(grd(0,k,WA(k)))
    a("s_waitcnt lgkmcnt(0)")
    stamp(a,4)
    accA,accB,pack=32,48,64
    for p in range(9):
        dma1=[gd(t,p+6) for t in range(5)] if p+6<=8 else []
        def upd(half,p=p):
            if p==8: return []
            return [f"v_add_u32 v{vGrd+half}, {((p+1)%6)*GSL}, v{vGb+half}"]
        n = 63
        if p+1>=6: n = sum(4+(5 if (q+6<=8 and q<p) else 0) for q in range(p-4,p+1))
        a.extend(gpass(p,5,lambda k,tb: ar(OF(k,tb)),WA,WB,grd,accA,accB,pack,vP,[],dma1,upd,f"s_waitcnt vmcnt({n}) lgkmcnt(0)",p==8))
    gtail(a,accB,pack,vP)
    stamp(a,5)
    a("s_waitcnt vmcnt(0)")
    stamp(a,6)
    stamps_out(a,7)
    a("s_endpgm")

def prologue(a, name):
    a(f""".p2align 8
.type {name},@function
{name}:
s_cmp_ge_u32 s2, 256
s_cbranch_scc1 L_exit_{name}
s_load_dwordx16 s[4:19], s[0:1], 0
s_load_dwordx8 s[20:27], s[0:1], 64""")
    stamp(a,0)
    a(f"""v_lshrrev_b32 v1, 6, v0
v_and_b32 v0, 63, v0
v_readfirstlane_b32 s{sW_}, v1
s_and_b32 s{sC}, s2, 3
s_bfe_u32 s{sMB}, s2, 0x10002
s_lshl_b32 s{sMB}, s{sMB}, 3
s_lshr_b32 s{sT0}, s2, 5
s_add_u32 s{sMB}, s{sMB}, s{sT0}
s_bfe_u32 s{sRHO}, s2, 0x20003
s_lshl_b32 s{sSRC}, s{sRHO}, 2
s_add_u32 s{sSRC}, s{sSRC}, s{sC}""")

def main_kernel(name):
    a=Asm()
    prologue(a,name)
    a(f"s_cmp_eq_u32 s{sRHO}, 3\ns_cbranch_scc1 L_A")
    role_F(a); role_A(a)
    a(f"L_exit_{name}:\ns_endpgm")
    return a

def reduce_kernel(name):
    a=Asm()
    prologue(a,name)
    sO=sSRC
    vL=1; vOut=2; vB=3; t0,t1,t2=4,5,6; SEL0=8; SEL1=12; vG=7; vG1=16
    LD=64; AF=20; AA=40; BB=208; GX=64
    a("s_waitcnt lgkmcnt(0)")
    srd(a,S_X,4,2048*1152); srd(a,S_W,20,1152); srd(a,S_W2,22,2048*1152); srd(a,S_P,26,P_BYTES); srd(a,S_B,18,1152)
    a(f"""s_lshl_b32 s{sT0}, s{sMB}, 7
s_lshl_b32 s{sT1}, s{sO}, 3
s_add_u32 s{sT0}, s{sT0}, s{sT1}
v_and_b32 v{t0}, 7, v0
v_add_u32 v{t0}, s{sT0}, v{t0}
v_mul_u32_u24 v{t0}, 1152, v{t0}
v_lshrrev_b32 v{t1}, 3, v0
v_mul_u32_u24 v{t1}, 144, v{t1}
v_add_u32 v{t2}, v{t0}, v{t1}""")
    for i in range(9):
        a(f"buffer_load_dwordx4 {vr(GX+8*i)}, v{t2}, {sr(S_X)}, 0 offen offset:{16*i}\nbuffer_load_dwordx4 {vr(GX+8*i+4)}, v{t1}, {sr(S_W)}, 0 offen offset:{16*i}")
    a(f"""v_lshrrev_b32 v{t1}, 5, v0
v_lshlrev_b32 v{t1}, 7, v{t1}
v_bfe_u32 v{t2}, v0, 3, 1
v_lshl_add_u32 v{t1}, v{t2}, 6, v{t1}
v_bfe_u32 v{t2}, v0, 4, 1
v_lshl_add_u32 v{t1}, v{t2}, 5, v{t1}
s_lshl_b32 s{sT0}, s{sW_}, 3
v_add_u32 v{vB}, s{sT0}, v{t1}
v_add_u32 v{vOut}, v{t0}, v{vB}""")
    for G in range(5): a(f"buffer_load_dwordx2 {vr(BB+2*G,2)}, v{vB}, {sr(S_B)}, 0 offen offset:{256*G}")
    a(f"""v_and_b32 v{t0}, 15, v0
v_and_b32 v{t1}, 1, v0
v_lshlrev_b32 v{t1}, 4, v{t1}
v_mov_b32 v{t2}, 0x3f80
v_lshlrev_b32 v{t1}, v{t1}, v{t2}
v_lshrrev_b32 v{t0}, 1, v{t0}""")
    for q in range(8): a(f"v_cmp_eq_u32 vcc, {q}, v{t0}\nv_cndmask_b32 v{SEL0+q}, 0, v{t1}, vcc")
    a(f"v_mov_b32 v{vG}, 0\ns_waitcnt vmcnt(5)")
    for i in range(9):
        for q in range(4): a(f"v_dot2_f32_bf16 v{vG}, v{GX+8*i+q}, v{GX+8*i+4+q}, v{vG}")
    a(f"""s_mul_i32 s{sPoff}, s{sMB}, {MS}
s_mul_i32 s{sT0}, s{sO}, {OS}
s_add_u32 s{sPoff}, s{sPoff}, s{sT0}
s_mul_i32 s{sT0}, s{sW_}, {GS}
s_add_u32 s{sPoff}, s{sPoff}, s{sT0}
v_lshlrev_b32 v{vL}, 4, v0""")
    for p in range(9):
        for i in range(4): a(f"buffer_load_dwordx4 {vr(LD+16*p+4*i)}, v{vL}, {sr(S_P)}, s{sPoff} offen offset:{1024*i} sc1")
        a(f"s_add_u32 s{sPoff}, s{sPoff}, {PS}")
    a(f"""v_add_f32_dpp v{vG}, v{vG}, v{vG} row_ror:8 row_mask:0xf bank_mask:0xf
v_mov_b32 v{t0}, v{vG}
v_permlane32_swap_b32 v{vG}, v{t0}
v_add_f32 v{vG}, v{vG}, v{t0}
v_mov_b32 v{t0}, v{vG}
v_permlane16_swap_b32 v{vG}, v{t0}
v_add_f32 v{vG}, v{vG}, v{t0}
v_mul_f32 v{vG}, {hex(f2u(-math.log2(math.e)))}, v{vG}
v_exp_f32 v{vG}, v{vG}
v_add_f32 v{vG}, 1.0, v{vG}
v_rcp_f32 v{vG}, v{vG}
v_sub_f32 v{vG1}, 1.0, v{vG}
s_waitcnt vmcnt(36)""")
    for G in range(5):
        r=AF+4*G
        a(f"v_lshlrev_b32 v{r}, 16, v{BB+2*G}\nv_and_b32 v{r+1}, 0xffff0000, v{BB+2*G}\nv_lshlrev_b32 v{r+2}, 16, v{BB+2*G+1}\nv_and_b32 v{r+3}, 0xffff0000, v{BB+2*G+1}")
    for p in range(9):
        G=p>>1; sel=vr(SEL1 if p&1 else SEL0)
        a(f"s_waitcnt vmcnt({4*(8-p)+G})")
        for i in range(3): a(f"{MF} {vr(AF+4*G)}, {sel}, {vr(LD+16*p+4*i)}, {vr(AF+4*G)}")
        a(f"{MF} {vr(AA+4*G)}, {sel}, {vr(LD+16*p+12)}, {vr(AA+4*G) if p&1 else '0'}")
        if p&1 or p==8:
            for q in range(4): a(f"v_mul_f32 v{AF+4*G+q}, v{AF+4*G+q}, v{vG1}")
            for q in range(4): a(f"v_fmac_f32 v{AF+4*G+q}, v{AA+4*G+q}, v{vG}")
            a(f"v_cvt_pk_bf16_f32 v{AF+4*G}, v{AF+4*G}, v{AF+4*G+1}\nv_cvt_pk_bf16_f32 v{AF+4*G+1}, v{AF+4*G+2}, v{AF+4*G+3}")
            if p==8: a("s_mov_b32 exec_hi, 0")
            a(f"buffer_store_dwordx2 {vr(AF+4*G,2)}, v{vOut}, {sr(S_W2)}, 0 offen offset:{256*G}")
    a(f"L_exit_{name}:\ns_endpgm")
    return a

def kd(name, vgpr, acc):
    return f""".p2align 6
.amdhsa_kernel {name}
  .amdhsa_next_free_vgpr {vgpr}
  .amdhsa_next_free_sgpr 96
  .amdhsa_accum_offset {acc}
  .amdhsa_group_segment_fixed_size 0
  .amdhsa_kernarg_size 96
  .amdhsa_user_sgpr_count 2
  .amdhsa_user_sgpr_kernarg_segment_ptr 1
  .amdhsa_system_sgpr_workgroup_id_x 1
.end_amdhsa_kernel
"""
def build(verbose=False):
    rep=[]
    s = "; @launch kernel=main_kernel grid=(256,1,1) block=(256,1,1) lds=163840\n; @launch kernel=reduce_kernel grid=(256,1,1) block=(256,1,1) lds=0\n"
    s += '.amdgcn_target "amdgcn-amd-amdhsa--gfx950"\n.text\n'
    s += main_kernel("main_kernel").text(rep)
    st=OPT['stamps']; OPT['stamps']=False
    s += reduce_kernel("reduce_kernel").text(rep); OPT['stamps']=st
    s += '.section .rodata,"a"\n' + kd("main_kernel",512,256) + kd("reduce_kernel",256,256)
    if verbose:
        for r in rep:
            if 'm0' not in r[1] and 'v_cmp' not in r[1]: print(r)
    return s
if __name__=="__main__":
    OPT['stamps'] = len(sys.argv)>2 and sys.argv[2]=='stamps'
    open(sys.argv[1],"w").write(build(verbose=True))
```
